```python
import torch

def _softmax(x, axis=-1):
    return torch.softmax(x, dim=axis)

def _gelu(x):
    return torch.nn.functional.gelu(x, approximate='tanh')

def _silu(x):
    return torch.nn.functional.silu(x)

def _sigmoid(x):
    return torch.sigmoid(x)

def _layernorm(x, axis=-1, eps=1e-05):
    m = x.mean(dim=axis, keepdim=True)
    v = x.var(dim=axis, keepdim=True, unbiased=False)
    return (x - m) / torch.sqrt(v + eps)

def _scatter_add(tgt, idx, src, axis=0):
    return tgt.clone().index_add_(axis, idx, src)

def _segment_sum(src, seg, n):
    out = torch.zeros((n,) + src.shape[1:], dtype=src.dtype)
    return out.index_add_(0, seg, src)

def _pad(x, pw):
    flat = tuple((v for pair in reversed(pw) for v in pair))
    return torch.nn.functional.pad(x, flat)
kernel_name = 'adaLN_cond__ssm_conv_h3__moe_arch_mod__prompt'

def setup_inputs():

    _w = lambda a: (lambda t: t.to(torch.bfloat16) if t.is_floating_point() else t)(torch.as_tensor(a))

    def _A_setup():
        B, S, D = (1, 2048, 640)
        ks = 4
        return {'q': _w((lambda *s: torch.randn(*s, dtype=torch.bfloat16) * 0.05)(B, S, D)), 'k': _w((lambda *s: torch.randn(*s, dtype=torch.bfloat16) * 0.4)(B, S, D)), 'v': _w((lambda *s: torch.randn(*s, dtype=torch.bfloat16) * 0.4)(B, S, D)), 'shift_k': _w((lambda *s: torch.randn(*s, dtype=torch.bfloat16) * 0.4)(D, ks) * 0.5), 'ssm_k': _w((lambda *s: torch.randn(*s, dtype=torch.bfloat16) * 0.8)(D, S) * (1.0 / S ** 0.5)), 'ssm_D': _w((lambda *s: torch.randn(*s, dtype=torch.bfloat16) * 0.4)(D))}
    _A_in = _A_setup()

    def _B_setup():
        B, S, D, F, C = (1, 2048, 640, 1728, 2)
        return {'x': _w((lambda *s: torch.randn(*s, dtype=torch.bfloat16) * 0.05)(B, S, D)), 'w_r': _w((lambda *s: torch.randn(*s, dtype=torch.bfloat16) * 0.05)(D)), 'w_gate': _w((lambda *s: torch.randn(*s, dtype=torch.bfloat16) * 0.05)(D, F)), 'w_up': _w((lambda *s: torch.randn(*s, dtype=torch.bfloat16) * 0.05)(D, F)), 'w_down': _w((lambda *s: torch.randn(*s, dtype=torch.bfloat16) * 0.05)(F, D))}
    _B_in = _B_setup()
    return {'A_q': _A_in['q'], 'A_k': _A_in['k'], 'A_v': _A_in['v'], 'A_shift_k': _A_in['shift_k'], 'A_ssm_k': _A_in['ssm_k'], 'A_ssm_D': _A_in['ssm_D'], 'B_x': _B_in['x'], 'B_w_r': _B_in['w_r'], 'B_w_gate': _B_in['w_gate'], 'B_w_up': _B_in['w_up'], 'B_w_down': _B_in['w_down'], 'c': _w((lambda *s: torch.randn(*s, dtype=torch.bfloat16) * 0.2)(1, 640) * 8.0), 'w_mod': _w((lambda *s: torch.randn(*s, dtype=torch.bfloat16) * 0.2)(640, 6 * 640) * 640 ** (-0.5) * 8.0)}

def reference(A_q, A_k, A_v, A_shift_k, A_ssm_k, A_ssm_D, B_x, B_w_r, B_w_gate, B_w_up, B_w_down, c, w_mod):

    def _A_ref(q, k, v, shift_k, ssm_k, ssm_D):
        B, S, D = q.shape
        ks = shift_k.shape[-1]
        k_pad = _pad(k, ((0, 0), (ks - 1, 0), (0, 0)))
        k_shift = torch.zeros_like(k)
        for t in range(ks):
            k_shift = k_shift + k_pad[:, t:t + S, :] * shift_k[:, ks - 1 - t][None, None, :]
        kv = k_shift * v
        L = 2 * S
        kv_pad = _pad(kv, ((0, 0), (0, S), (0, 0)))
        kf_pad = _pad(ssm_k, ((0, 0), (0, S)))
        kv_f = (lambda x, axes=(-2, -1): torch.fft.rfft2(x.float(), dim=axes))(kv_pad[:, None, :, :], axes=(1, 2))
        kf_f = (lambda x, axes=(-2, -1): torch.fft.rfft2(x.float(), dim=axes))(kf_pad[:, None, :], axes=(1, 2))
        kf_f = (lambda x, *d: x.permute(*d))(kf_f, 1, 2, 0)
        y_f = kv_f * kf_f[None, :, :, :]
        y = (lambda x, s, axes=(-2, -1): torch.fft.irfft2(x, s=s, dim=axes).to(torch.bfloat16))(y_f, (1, L), axes=(1, 2))[:, 0, :S, :]
        y = y + kv * ssm_D[None, None, :]
        return q * y

    def _B_ref(x, w_r, w_gate, w_up, w_down):
        B, S, D = x.shape
        C = 2
        r = x @ w_r
        idx = torch.argsort(-r, axis=-1)[:, :C]
        idx_e = (lambda x, n, axis: torch.repeat_interleave(x, n, dim=axis))(idx.reshape(B, C, 1), D, axis=2)
        x_sel = (lambda x, i, axis: torch.take_along_dim(x, i, dim=axis))(x, idx_e, axis=1)
        g = _silu(x_sel @ w_gate)
        u = x_sel @ w_up
        y = g * u @ w_down
        r_sel = _sigmoid((lambda x, i, axis: torch.take_along_dim(x, i, dim=axis))(r, idx, axis=1))
        y = y * r_sel.reshape(B, C, 1)
        b_off = (torch.arange(B) * S).reshape(B, 1)
        flat_idx = (idx + b_off).reshape(B * C)
        zero = (x * 0.0).reshape(B * S, D)
        upd = _scatter_add(zero, flat_idx, y.reshape(B * C, D), axis=0)
        return x + upd.reshape(B, S, D)
    x = A_q
    mod = (_silu(c) @ w_mod).reshape(c.shape[0], 6, 1, -1)
    sa, ca, ga, sb, cb, gb = (mod[:, 0].clone(), mod[:, 1].clone(), mod[:, 2].clone(), mod[:, 3].clone(), mod[:, 4].clone(), mod[:, 5].clone())
    h = _layernorm(x, axis=-1) * (1 + ca) + sa
    x = x + ga * _A_ref(h, A_k, A_v, A_shift_k, A_ssm_k, A_ssm_D)
    h = _layernorm(x, axis=-1) * (1 + cb) + sb
    x = x + gb * _B_ref(h, B_w_r, B_w_gate, B_w_up, B_w_down)
    return x
```

```python
import re

TRANS = ('v_exp_', 'v_log_', 'v_rcp_', 'v_rsq_', 'v_sqrt_', 'v_sin_', 'v_cos_')

def _regs(tok):
    tok = tok.strip()
    tok = re.sub(r'^-', '', tok)
    tok = re.sub(r'^abs\((.*)\)$', r'\1', tok)
    tok = re.sub(r'^\|(.*)\|$', r'\1', tok)
    m = re.fullmatch(r'([vsa])(\d+)', tok)
    if m: return {(m.group(1), int(m.group(2)))}
    m = re.fullmatch(r'([vsa])\[(\d+):(\d+)\]', tok)
    if m: return {(m.group(1), i) for i in range(int(m.group(2)), int(m.group(3)) + 1)}
    if tok in ('vcc', 'vcc_lo', 'vcc_hi'): return {('vcc', 0)}
    if tok in ('exec', 'exec_lo', 'exec_hi'): return {('exec', 0)}
    if tok == 'm0': return {('m0', 0)}
    return set()

class Ins:
    def __init__(self, text):
        self.text = text
        t = text.split(';')[0].strip()
        self.op = t.split()[0] if t else ''
        rest = t[len(self.op):].strip()
        parts = [p.strip() for p in re.split(r',(?![^\[]*\])', rest)] if rest else []
        ops = []
        self.mods = ''
        for i, p in enumerate(parts):
            if i == len(parts) - 1:
                sp = p.split(None, 1)
                ops.append(sp[0]); self.mods = sp[1] if len(sp) > 1 else ''
            else: ops.append(p)
        self.ops = ops
        op = self.op
        self.mfma = op.startswith('v_mfma')
        self.valu = op.startswith('v_') and not self.mfma
        self.vmem = op.startswith(('buffer_', 'global_', 'flat_'))
        self.ds = op.startswith('ds_')
        self.salu = op.startswith('s_')
        self.trans = op.startswith(TRANS)
        self.dpp = bool(re.search(r'row_|quad_perm|wave_', self.mods))
        self.perml = op.startswith('v_permlane')
        self.lanerd = op.startswith(('v_readlane', 'v_readfirstlane'))
        self.states = 1
        if op == 's_nop': self.states = int(ops[0], 0) + 1
        R = [_regs(o) for o in ops]
        self.w = set(); self.r = set()
        if self.mfma:
            self.w = R[0]; self.A = R[1]; self.B = R[2]; self.C = R[3]; self.r = R[1] | R[2] | R[3]
            self.passes = 8 if '32x32' in op else 4
        elif self.valu:
            if self.perml:
                self.w = R[0] | R[1]; self.r = R[0] | R[1]
            elif op.startswith(('v_add_co', 'v_sub_co', 'v_addc_co', 'v_subb_co', 'v_subrev_co', 'v_div_scale', 'v_mad_u64')):
                self.w = R[0] | R[1]; self.r = set().union(*R[2:])
            else:
                self.w = R[0]; self.r = set().union(*R[1:]) if len(R) > 1 else set()
                if op.startswith(('v_fmac', 'v_dot2c', 'v_writelane', 'v_pk_fmac')) or self.dpp or 'd16' in op: self.r |= R[0]
                if op.startswith('v_cmpx'): self.w |= {('exec', 0)}
        elif self.vmem:
            store = '_store_' in op or ('atomic' in op and 'sc0' not in self.mods)
            islds = bool(re.search(r'\blds\b', self.mods)) or '_lds_' in op
            self.islds = islds
            if store or islds: self.r = set().union(*R)
            else:
                self.w = R[0]; self.r = set().union(*R[1:])
                if 'd16' in op: self.r |= R[0]
            self.wide = store and ('x3' in op or 'x4' in op)
            if store:
                self.data = R[0] if op.startswith('buffer_') else R[1]
        elif self.ds:
            if op.startswith(('ds_write', 'ds_add_f32', 'ds_add_u32', 'ds_max', 'ds_min')) and '_rtn' not in op: self.r = set().union(*R)
            else:
                self.w = R[0]; self.r = set().union(*R[1:])
                if 'd16' in op: self.r |= R[0]
        elif self.salu:
            if op.startswith(('s_cmp', 's_cbranch', 's_branch', 's_waitcnt', 's_barrier', 's_nop', 's_sleep', 's_endpgm', 's_setprio', 's_bitcmp')):
                self.r = set().union(*R) if R else set()
            else:
                self.w = R[0] if R else set(); self.r = set().union(*R[1:]) if len(R) > 1 else set()
                if 'saveexec' in op: self.w |= {('exec', 0)}; self.r |= {('exec', 0)}

def need(p, c):
    n = 0
    isv = lambda S: {x for x in S if x[0] in 'va' and x[0] != 'vcc'}
    iss = lambda S: {x for x in S if x[0] in ('s', 'vcc')}
    if p.valu:
        sw = iss(p.w); vw = isv(p.w)
        if sw:
            if c.vmem and (sw & c.r): n = max(n, 5)
            if (c.valu or c.mfma) and (sw & c.r): n = max(n, 4 if c.op.startswith(('v_readlane', 'v_writelane')) else 2)
            if c.valu and ('vcc', 0) in sw and c.op.startswith('v_div_fmas'): n = max(n, 4)
        if vw:
            if c.valu and c.dpp and (vw & c.r): n = max(n, 2)
            if c.perml and (vw & c.r): n = max(n, 2)
            if c.lanerd and (vw & c.r): n = max(n, 1)
            if c.mfma and (vw & c.r): n = max(n, 2)
            if p.trans and (vw & c.r) and not c.trans: n = max(n, 1)
            if ('op_sel' in p.mods and not p.op.startswith('v_pk_')) or 'sdwa' in p.op or 'dst_sel' in p.mods:
                if vw & (c.r | c.w): n = max(n, 1)
        if ('exec', 0) in p.w:
            if c.dpp: n = max(n, 5)
            if c.mfma or c.perml or c.lanerd: n = max(n, 4)
    if p.vmem and getattr(p, 'wide', False):
        if (c.valu or c.mfma) and (p.data & c.w): n = max(n, 2)
        elif (p.data & c.w): n = max(n, 1)
    if p.salu and ('m0', 0) in p.w and c.vmem and getattr(c, 'islds', False): n = max(n, 1)
    if p.mfma:
        k = {4: (6, 8, 3), 8: (10, 12, 7)}[p.passes]
        if c.mfma:
            if p.w & (c.A | c.B): n = max(n, k[1])
            if p.w & c.C and not (p.w == c.C and p.passes == c.passes): n = max(n, k[0])
            if p.w & c.w and not (p.w == c.w and p.w == c.C): n = max(n, k[0])
        elif c.valu or c.vmem or c.ds:
            if p.w & (c.r | c.w): n = max(n, k[1])
            if c.valu and (p.C & c.w): n = max(n, k[2])
    return n

class Asm:
    def __init__(self):
        self.lines = []
    def __call__(self, text):
        for l in text.split('\n'):
            l = l.strip()
            if l: self.lines.append(l)
    def label(self, name): self.lines.append(name + ':')
    def finish(self):
        old = []
        for l in self.lines:
            t = l.split(';')[0].strip()
            if not t or t.endswith(':') or t.startswith('.'): old.append(l)
            else: old.append(Ins(l))
        lab = lambda x: x.split(';')[0].strip()[:-1] if isinstance(x, str) and x.split(';')[0].strip().endswith(':') else None
        MAXD = 13
        oldsrc = {}
        for i, it in enumerate(old):
            if isinstance(it, Ins) and it.op.startswith(('s_cbranch', 's_branch')): oldsrc.setdefault(it.ops[0], []).append(i)
        new = []
        npos = {}
        self.npads = 0
        for i, it in enumerate(old):
            if isinstance(it, Ins):
                worst = 0
                stack = [(True, len(new) - 1, 0)]
                seen = set()
                while stack:
                    isnew, j, d = stack.pop()
                    L = new if isnew else old
                    while j >= 0 and d < MAXD:
                        if (isnew, j, d) in seen: break
                        seen.add((isnew, j, d))
                        p = L[j]
                        if isinstance(p, str):
                            nm = lab(p)
                            if nm:
                                for b in oldsrc.get(nm, []):
                                    stack.append((True, npos[b], d) if b in npos else (False, b, d))
                            j -= 1; continue
                        if p.op == 's_endpgm': break
                        worst = max(worst, need(p, it) - d)
                        d += p.states; j -= 1
                if worst > 0:
                    new.append(Ins(f's_nop {worst - 1}   ; pad')); self.npads += 1
            npos[i] = len(new)
            new.append(it)
        return '\n'.join(x if isinstance(x, str) else '    ' + x.text for x in new) + '\n'
```

```python
import sys
sys.path.insert(0, 'gen')
from asmlib import Asm

NAME = 'adaLN_cond__ssm_conv_h3__moe_arch_mod__prompt'

EPOCH = 0
FLAG = 0x1000
FLAG2 = 0x5000
SMALL = 0x9000
GRAN = 0x9000
MODV = 0xD000
AVEC = 0xF000
DEC = 0x10C00
H2C = 0x20000
X1C = 0xC0000
STAMP = 0x180000
KVT = 0x200000
YIN = 0x500000
WSN = 0x800000
OOB = 0x80000000
KCH = 33168
KB = [0, 260, 519, 778, 1037, 1296, 1556, 1815]
UB = 4 * KCH
UCH = 4576
STG = UB + 4 * UCH
MISC = STG + 10240
LN1P = MISC
LN2P = MISC + 256
RP = MISC + 512
DECL = MISC + 640
CNT = MISC + 704
LDS_BYTES = 163840
MODP = 98304
SILU = 110592
import os
SPIN = int(os.environ.get('SPIN', 200000))

sWG, sW, sTAG, sTC, sG, sRID, sTB, sCONV = 's2', 's3', 's4', 's5', 's6', 's7', 's8', 's9'
pQ, pK, pV, pSH, pSK, pSD, pWR = 's[16:17]', 's[18:19]', 's[20:21]', 's[22:23]', 's[24:25]', 's[26:27]', 's[30:31]'
pWG, pWU, pWD, pC, pWM, pOUT, pWS = 's[32:33]', 's[34:35]', 's[36:37]', 's[38:39]', 's[40:41]', 's[42:43]', 's[46:47]'
rK, rV, rWS, rSK, rOUT, rX, rT, rT2 = 's[48:51]', 's[52:55]', 's[56:59]', 's[60:63]', 's[64:67]', 's[68:71]', 's[72:75]', 's[76:79]'


def vr(a, n): return f'v[{a}:{a + n - 1}]' if n > 1 else f'v{a}'


def build(stamps=False, opt=None):
    opt = opt or {}
    A = Asm()
    nstamp = [0]

    def srd(r, lo, nbytes):
        b = int(r[2:r.index(':')])
        A(f's_mov_b32 s{b}, s{lo}\ns_mov_b32 s{b + 1}, s{lo + 1}\ns_mov_b32 s{b + 2}, {nbytes}\ns_mov_b32 s{b + 3}, 0x20000')

    def stamp(i):
        if stamps:
            A(f's_memrealtime s[82:83]\ns_waitcnt lgkmcnt(0)\ns_mov_b32 s{84 + i}, s82')

    def stamp_flush():
        if not stamps: return
        n = nstamp[0]; nstamp[0] += 1
        A(f's_mul_i32 s80, {sWG}, 5\ns_add_u32 s80, s80, {sW}\ns_lshl_b32 s80, s80, 6\ns_add_u32 s80, s80, {STAMP}')
        for i in range(16): A(f'v_mov_b32 v{236 + i}, s{84 + i}')
        A(f'v_mov_b32 v235, s80\nv_cmp_eq_u32 vcc, 0, v1\ns_and_saveexec_b64 s[80:81], vcc')
        for i in range(4): A(f'buffer_store_dwordx4 v[{236 + 4 * i}:{239 + 4 * i}], v235, {rWS}, 0 offen offset:{16 * i}')
        A('s_mov_b64 exec, s[80:81]')

    def bf16r(dst, src):
        A(f'v_cvt_pk_bf16_f32 {dst}, {src}, {src}\nv_lshlrev_b32 {dst}, 16, {dst}')

    def unpack(dst, src):
        A(f'v_lshlrev_b32 v{dst}, 16, v{src}\nv_and_b32 v{dst + 1}, 0xffff0000, v{src}')

    lbl = [0]

    def newlab(p):
        lbl[0] += 1
        return f'L_{p}_{lbl[0]}'

    def poll(loads, check, sleep=2):
        top, done = newlab('poll'), newlab('done')
        A('s_mov_b32 s15, 0')
        A.label(top)
        loads()
        A('s_waitcnt vmcnt(0)')
        check()
        A(f's_cbranch_vccz {done}')
        A(f's_sleep {sleep}\ns_add_u32 s15, s15, 1\ns_cmp_lt_u32 s15, {SPIN}\ns_cbranch_scc1 {top}')
        A.label(done)

    def any_sentinel(regs, tmp):
        regs = list(regs)
        A(f'v_max3_u32 v{tmp}, v{regs[0]}, v{regs[1]}, v{regs[2]}' if len(regs) >= 3 else f'v_max_u32 v{tmp}, v{regs[0]}, v{regs[-1]}')
        rest = regs[3:]
        while len(rest) >= 2:
            A(f'v_max3_u32 v{tmp}, v{tmp}, v{rest[0]}, v{rest[1]}'); rest = rest[2:]
        if rest: A(f'v_max_u32 v{tmp}, v{tmp}, v{rest[0]}')
        A(f'v_cmp_eq_u32 vcc, -1, v{tmp}')

    def lds_sync4(off, tmp):
        top, done = newlab('ls'), newlab('lsd')
        A(f'''s_waitcnt lgkmcnt(0)
            v_mov_b32 v{tmp}, {off}
            v_mov_b32 v{tmp + 1}, 1
            v_cmp_eq_u32 vcc, 0, v1
            s_and_saveexec_b64 s[12:13], vcc
            ds_add_u32 v{tmp}, v{tmp + 1}
            s_mov_b64 exec, s[12:13]
            s_mov_b32 s15, 0''')
        A.label(top)
        A(f'''ds_read_b32 v{tmp + 1}, v{tmp}
            s_waitcnt lgkmcnt(0)
            v_cmp_gt_u32 vcc, 4, v{tmp + 1}
            s_cbranch_vccz {done}
            s_add_u32 s15, s15, 1
            s_cmp_lt_u32 s15, {SPIN * 8}
            s_cbranch_scc1 {top}''')
        A.label(done)

    A(f'''s_cmp_ge_u32 {sWG}, 256
        s_cbranch_scc1 L_exit
        s_load_dwordx16 s[16:31], s[0:1], 0
        s_load_dwordx16 s[32:47], s[0:1], 64''')
    if stamps: A('s_memrealtime s[82:83]')
    A(f'''v_and_b32 v1, 63, v0
        v_lshrrev_b32 v2, 6, v0
        s_and_b32 s10, {sWG}, 7
        v_readfirstlane_b32 {sW}, v2
        s_lshr_b32 s11, {sWG}, 6
        s_lshl_b32 s11, s11, 3
        s_add_u32 {sTC}, s10, s11
        s_lshr_b32 s11, {sWG}, 3
        s_and_b32 {sG}, s11, 7
        s_mul_i32 s12, s10, 20
        s_add_u32 s12, s12, s11          ; q
        s_sub_u32 s13, s11, 20
        s_lshl_b32 s13, s13, 3
        s_add_u32 s13, s13, s10          ; n
        s_add_u32 s14, s13, 160
        s_cmp_lt_u32 s11, 20
        s_cselect_b32 {sRID}, s12, s13
        s_cselect_b32 {sTB}, s12, s14
        s_cselect_b32 {sCONV}, 1, 0''')
    A(f'''v_lshrrev_b32 v4, 3, v0            ; cp
        v_and_b32 v5, 7, v0                ; rb
        s_mul_i32 s10, {sTC}, {64 * 1280}
        s_mul_i32 s11, {sG}, 160
        s_add_u32 s10, s10, s11
        v_mul_u32_u24 v2, 10240, v5
        v_lshl_add_u32 v2, v4, 2, v2
        v_add_u32 v2, s10, v2              ; vOff
        v_subrev_u32 v3, 3840, v2
        v_mov_b32 v6, {OOB}
        v_cmp_gt_u32 vcc, 1280, v2
        v_cndmask_b32 v3, v3, v6, vcc      ; vHalo
        s_mul_i32 s10, {sG}, 640
        v_lshlrev_b32 v120, 4, v4
        v_add_u32 v120, s10, v120
        s_mul_i32 s10, {sG}, {80 * 4096}
        s_sub_u32 s11, 31, {sTC}
        s_lshl_b32 s11, s11, 7
        s_add_u32 s10, s10, s11
        s_add_u32 s10, s10, {KVT}
        v_sub_u32 v121, 7, v5
        v_lshlrev_b32 v121, 4, v121
        v_lshl_add_u32 v121, v4, 13, v121
        v_add_u32 v121, s10, v121
        s_mul_i32 s10, {sTB}, 10240
        s_add_u32 s10, s10, {YIN}
        v_lshlrev_b32 v122, 4, v0
        v_add_u32 v123, s10, v122
        s_mul_i32 s10, {sTB}, 2560
        s_add_u32 s10, s10, {H2C}
        v_add_u32 v124, s10, v122
        s_lshl_b32 s10, {sWG}, 7
        s_add_u32 s10, s10, {SMALL - 160 * 16}
        v_add_u32 v125, s10, v122
        v_cmp_gt_u32 vcc, 160, v0
        v_cndmask_b32 v124, v125, v124, vcc
        v_cmp_gt_u32 vcc, 168, v0
        v_cndmask_b32 v124, v6, v124, vcc
        v_mov_b32 v28, -1
        v_mov_b32 v29, -1
        v_mov_b32 v30, -1
        v_mov_b32 v31, -1
        s_lshl_b32 s10, {sRID}, 2
        s_add_u32 s10, s10, {sW}
        s_lshl_b32 s10, s10, 12
        s_cmp_lt_u32 {sW}, 4
        s_cselect_b32 s11, {sCONV}, 0
        s_cmp_eq_u32 s11, 1
        s_cselect_b32 s10, s10, {OOB}
        v_lshlrev_b32 v126, 4, v1
        v_add_u32 v126, s10, v126
        v_add_u32 v127, 1008, v126
        v_subrev_u32 v128, 16, v126
        v_cmp_eq_u32 vcc, 0, v1
        v_cndmask_b32 v128, v128, v6, vcc
        v_lshlrev_b32 v129, 2, v0          ; c offset
        s_lshl_b32 s14, {sRID}, 3
        s_waitcnt lgkmcnt(0)''')
    if stamps: A('s_mov_b32 s84, s82')
    srd(rK, 18, 2621440)
    srd(rV, 20, 2621440)
    A(f'''global_load_dwordx4 v[4:7], v120, {pSH}
        s_movk_i32 s10, 5120''')
    for j in range(3): A(f'buffer_load_dword v{8 + j}, v3, {rK}, 0 offen offset:{1280 * j}')
    for j in range(8): A(f'buffer_load_dword v{11 + j}, v2, {rK}, {"0" if j < 4 else "s10"} offen offset:{1280 * (j & 3)}')
    for j in range(8): A(f'buffer_load_dword v{20 + j}, v2, {rV}, {"0" if j < 4 else "s10"} offen offset:{1280 * (j & 3)}')
    srd(rWS, 46, WSN)
    A(f'''s_load_dword {sTAG}, {pWS}, {EPOCH}
        s_load_dwordx2 s[80:81], {pSD}, s14
        buffer_store_dwordx4 v[28:31], v123, {rWS}, 0 offen sc1
        buffer_store_dwordx4 v[28:31], v123, {rWS}, s10 offen sc1
        buffer_store_dwordx4 v[28:31], v124, {rWS}, 0 offen sc1''')
    srd(rSK, 24, 2621440)
    for r in range(4):
        A(f'buffer_load_dwordx4 v[{32 + 8 * r}:{35 + 8 * r}], ' + (f'v128, {rSK}, 0 offen' if r == 0 else f'v127, {rSK}, 0 offen offset:{1024 * (r - 1)}'))
        A(f'buffer_load_dwordx4 v[{36 + 8 * r}:{39 + 8 * r}], v126, {rSK}, 0 offen offset:{1024 * r}')
    A(f'global_load_dword v130, v129, {pC}')
    srd(rX, 16, 2621440)
    srd(rOUT, 42, 2621440)
    A(f'''v_lshrrev_b32 v132, 3, v1
        v_lshlrev_b32 v132, 3, v132
        s_mul_i32 s10, {sW}, 320
        v_add_u32 v132, s10, v132
        v_and_b32 v133, 7, v1              ; t
        v_mul_u32_u24 v131, 1280, v133
        v_add_u32 v131, v131, v132
        s_mul_i32 s10, {sTB}, 10240
        s_cmp_lt_u32 {sW}, 4
        s_cselect_b32 s10, s10, {OOB}
        v_add_u32 v131, s10, v131
        v_mov_b32 v134, {CNT}
        v_mov_b32 v136, 0
        v_mov_b32 v137, 0
        ds_write_b64 v134, v[136:137]''')
    A('s_waitcnt vmcnt(20)')
    stamp(1)
    A('''v_lshlrev_b32 v86, 16, v4
        v_lshlrev_b32 v87, 16, v6
        v_and_b32 v88, 0xffff0000, v4
        v_and_b32 v89, 0xffff0000, v6
        v_lshlrev_b32 v90, 16, v5
        v_lshlrev_b32 v91, 16, v7
        v_and_b32 v92, 0xffff0000, v5
        v_and_b32 v93, 0xffff0000, v7''')
    for j in range(11): unpack(64 + 2 * j, 8 + j)
    kf = lambda j: vr(64 + 2 * j, 2)
    for t in range(8): A(f'v_pk_mul_f32 {vr(94 + 2 * t, 2)}, {kf(t)}, v[92:93]')
    for tap, w in ((1, 90), (2, 88), (3, 86)):
        for t in range(8): A(f'v_pk_fma_f32 {vr(94 + 2 * t, 2)}, {kf(t + tap)}, v[{w}:{w + 1}], {vr(94 + 2 * t, 2)}')
    A('s_waitcnt vmcnt(12)')
    for t in range(8): unpack(64 + 2 * t, 20 + t)
    for t in range(8): A(f'v_pk_mul_f32 {vr(94 + 2 * t, 2)}, {vr(94 + 2 * t, 2)}, {vr(64 + 2 * t, 2)}')
    for e in range(2):
        for k in range(4):
            A(f'v_cvt_pk_bf16_f32 v{112 + 4 * e + k}, v{94 + 2 * (7 - 2 * k) + e}, v{94 + 2 * (6 - 2 * k) + e}')
    A(f'''s_movk_i32 s10, 4096
        buffer_store_dwordx4 v[112:115], v121, {rWS}, 0 offen sc1
        buffer_store_dwordx4 v[116:119], v121, {rWS}, s10 offen sc1''')
    stamp(2)
    XP = 140
    for j in range(5): A(f'buffer_load_dwordx2 {vr(XP + 2 * j, 2)}, v131, {rX}, 0 offen offset:{64 * j}')
    A(f'''s_waitcnt lgkmcnt(0)
        s_add_u32 {sTAG}, {sTAG}, 1
        s_lshl_b32 s10, {sTC}, 6
        s_lshl_b32 s11, {sG}, 11
        s_add_u32 s10, s10, s11
        s_add_u32 s10, s10, {FLAG}
        v_mov_b32 v138, s10
        v_mov_b32 v139, {sTAG}
        s_cmp_eq_u32 {sCONV}, 0
        s_cbranch_scc1 L_nonconv''')

    def flag_store():
        skip = newlab('fs')
        A(f'''s_cmp_lg_u32 {sW}, 0
            s_cbranch_scc1 {skip}
            s_mov_b64 s[12:13], exec
            s_mov_b64 exec, 1
            buffer_store_dword v139, v138, {rWS}, 0 offen sc1
            s_mov_b64 exec, s[12:13]''')
        A.label(skip)

    def ln_partials(src, n0, dstlds, tmp):
        a, b = tmp, tmp + 2
        A(f'v_pk_add_f32 {vr(a, 2)}, {vr(src, 2)}, {vr(src + 2, 2)}')
        A(f'v_pk_mul_f32 {vr(b, 2)}, {vr(src, 2)}, {vr(src, 2)}')
        A(f'v_pk_fma_f32 {vr(b, 2)}, {vr(src + 2, 2)}, {vr(src + 2, 2)}, {vr(b, 2)}')
        for p in range(2, 10):
            A(f'v_pk_add_f32 {vr(a, 2)}, {vr(a, 2)}, {vr(src + 2 * p, 2)}')
            A(f'v_pk_fma_f32 {vr(b, 2)}, {vr(src + 2 * p, 2)}, {vr(src + 2 * p, 2)}, {vr(b, 2)}')
        A(f'''v_add_f32 v{a}, v{a}, v{a + 1}
            v_add_f32 v{b}, v{b}, v{b + 1}
            v_permlane32_swap_b32 v{a}, v{b}
            v_add_f32 v{a}, v{a}, v{b}
            v_mov_b32 v{b}, v{a}
            v_permlane16_swap_b32 v{a}, v{b}
            v_add_f32 v{a}, v{a}, v{b}
            v_add_f32_dpp v{a}, v{a}, v{a} row_ror:8 row_mask:0xf bank_mask:0xf
            ds_write_b32 v{n0}, v{a} offset:{dstlds - MISC}''')

    def ln_stats(srclds, tmp, inv, nmi):
        A(f'''ds_read_b128 {vr(tmp, 4)}, v151 offset:{srclds - MISC}
            ds_read_b128 {vr(tmp + 4, 4)}, v151 offset:{srclds - MISC + 16}
            s_mov_b32 s10, 0x3acccccd       ; 1/640
            s_waitcnt lgkmcnt(0)
            v_pk_add_f32 {vr(tmp, 2)}, {vr(tmp, 2)}, {vr(tmp + 2, 2)}
            v_pk_add_f32 {vr(tmp + 4, 2)}, {vr(tmp + 4, 2)}, {vr(tmp + 6, 2)}
            v_pk_add_f32 {vr(tmp, 2)}, {vr(tmp, 2)}, {vr(tmp + 4, 2)}
            v_mul_f32 v{tmp}, s10, v{tmp}
            v_mul_f32 v{tmp + 1}, s10, v{tmp + 1}
            v_fma_f32 v{tmp + 1}, -v{tmp}, v{tmp}, v{tmp + 1}
            v_max_f32 v{tmp + 1}, 0, v{tmp + 1}
            v_cvt_pk_bf16_f32 v{tmp + 2}, v{tmp}, v{tmp + 1}
            v_and_b32 v{tmp + 1}, 0xffff0000, v{tmp + 2}
            v_lshlrev_b32 v{tmp}, 16, v{tmp + 2}
            v_add_f32 v{tmp + 1}, 0x3727c5ac, v{tmp + 1}''')
        bf16r(f'v{tmp + 1}', f'v{tmp + 1}')
        A(f'v_sqrt_f32 v{tmp + 1}, v{tmp + 1}')
        bf16r(f'v{tmp + 1}', f'v{tmp + 1}')
        A(f'''v_rcp_f32 v{inv}, v{tmp + 1}
            v_mul_f32 v{nmi}, v{tmp}, v{inv}
            v_sub_f32 v{nmi}, 0, v{nmi}''')

    def row_lds_addrs():
        A(f'''v_lshlrev_b32 v151, 5, v133
            v_add_u32 v151, {MISC}, v151
            v_lshrrev_b32 v150, 5, v1
            v_lshlrev_b32 v150, 2, v150
            s_lshl_b32 s10, {sW}, 3
            v_add3_u32 v150, v150, s10, v151''')

    def ln1_from_packed(tmpf):
        for p in range(10): unpack(tmpf + 2 * p, XP + p)
        ln_partials(tmpf, 150, LN1P, tmpf + 20)

    MP = 152
    WRP = 212

    def param_loads():
        A(f'''v_add_u32 v135, {MODV}, v132
            s_movk_i32 s10, 3840''')
        for vec in range(6):
            for j in range(5):
                A(f'buffer_load_dwordx2 {vr(MP + 10 * vec + 2 * j, 2)}, v135, {rWS}, {"0" if vec < 3 else "s10"} offen offset:{1280 * (vec % 3) + 64 * j} sc1')

    def wr_loads():
        for j in range(5): A(f'global_load_dwordx2 {vr(WRP + 2 * j, 2)}, v132, {pWR} offset:{64 * j}')

    A(f'''s_cmp_eq_u32 {sW}, 4
        s_cbranch_scc1 L_conv_w4''')
    A(f'''s_mul_i32 s10, {sW}, {KCH}
        v_lshlrev_b32 v2, 4, v1
        v_add_u32 v3, 16, v2
        v_add_u32 v3, s10, v3
        v_and_b32 v4, 15, v1
        v_lshrrev_b32 v5, 4, v1            ; kg
        v_add_u32 v6, 1, v4
        v_and_b32 v7, 7, v6                ; s
        v_lshrrev_b32 v6, 3, v6
        v_add_u32 v6, v6, v5               ; m
        v_mul_u32_u24 v8, 259, v7
        v_add_u32 v6, v6, v8
        v_cmp_lt_u32 vcc, 0, v7
        v_addc_co_u32 v6, vcc, 0, v6, vcc
        v_cmp_lt_u32 vcc, 5, v7
        v_addc_co_u32 v6, vcc, 0, v6, vcc
        v_lshlrev_b32 v6, 4, v6
        v_add_u32 v222, s10, v6
        s_mul_i32 s11, {sW}, {UCH}
        s_add_u32 s11, s11, {UB}
        v_add_u32 v224, s11, v2
        v_lshlrev_b32 v6, 1, v4
        v_sub_u32 v6, v5, v6
        v_add_u32 v6, {254 - 28 * 8}, v6
        v_lshlrev_b32 v6, 4, v6
        v_add_u32 v223, s11, v6
        v_mov_b32 v8, 0
        v_mov_b32 v9, 0
        v_mov_b32 v10, 0
        v_mov_b32 v11, 0
        s_mov_b64 s[12:13], exec
        s_mov_b64 exec, 0x7f
        ds_write_b128 v222, v[8:11]
        s_mov_b64 exec, 0x3fffffff
        ds_write_b128 v224, v[8:11] offset:4096
        s_mov_b64 exec, s[12:13]''')

    def kbuild(r):
        D = 32 + 8 * r
        E1, O0, O1 = 64, 70, 76
        for j in range(6): A(f'v_mov_b32 v{E1 + j}, v{D + 1 + j}')
        for j in range(6): A(f'v_alignbit_b32 v{O0 + j}, v{D + j + 1}, v{D + j}, 16')
        for j in range(6): A(f'v_alignbit_b32 v{O1 + j}, v{D + j + 2}, v{D + j + 1}, 16')
        src = {0: D, 4: D + 2, 2: E1, 6: E1 + 2, 1: O0, 5: O0 + 2, 3: O1, 7: O1 + 2}
        for s in (0, 4, 2, 6, 1, 5, 3, 7):
            A(f'ds_write_b128 v3, {vr(src[s], 4)} offset:{KB[s] * 16 + 1024 * r}')
        if r == 3:
            A(f'''s_mov_b64 s[12:13], exec
                s_mov_b32 exec_lo, 0
                s_mov_b32 exec_hi, 0x80000000
                ds_write_b128 v3, {vr(D + 4, 4)} offset:{1024 * 3 + 16}
                s_mov_b64 exec, s[12:13]''')

    A('s_waitcnt vmcnt(8)')
    nb = opt.get('kb_before', 2)
    for r in range(nb):
        kbuild(r)
    A('s_waitcnt vmcnt(5)\ns_barrier')
    flag_store()
    stamp(3)
    for r in range(nb, 4):
        kbuild(r)
    A(f'''s_lshr_b32 s10, {sW}, 1
        s_cmp_eq_u32 s10, 0
        s_cselect_b32 s10, s80, s81
        s_and_b32 s11, {sW}, 1
        s_lshl_b32 s11, s11, 4
        s_lshr_b32 s10, s10, s11
        s_and_b32 s10, s10, 0xffff
        v_lshlrev_b32 v6, 3, v5
        v_add_u32 v6, v6, v4
        v_sub_u32 v6, 15, v6               ; j*
        v_and_b32 v7, 1, v6
        v_lshlrev_b32 v7, 4, v7
        v_lshlrev_b32 v7, v7, s10
        v_ashrrev_i32 v6, 1, v6''')
    for d in range(4):
        A(f'v_cmp_eq_u32 vcc, {d}, v6\nv_cndmask_b32 v{12 + d}, 0, v7, vcc')
    row_lds_addrs()
    A('s_waitcnt vmcnt(0)')
    ln1_from_packed(64)
    wr_loads()
    A(f'''s_lshl_b32 s10, {sRID}, 2
        s_add_u32 s10, s10, {sW}
        s_lshl_b32 s10, s10, 12
        s_add_u32 s10, s10, {KVT}
        v_add_u32 v2, s10, v2
        s_waitcnt lgkmcnt(0)
        s_barrier''')
    stamp(4)
    for r in range(4): A(f'buffer_load_dwordx4 {vr(32 + 4 * r, 4)}, v2, {rWS}, 0 offen offset:{1024 * r} sc1')
    S0A, S0B, S1A, S1B = 48, 80, 112, 16
    S1A, S1B = 16, 228
    ACC = 112
    acc = lambda c: (112 + 4 * c) if c < 4 else (36 + 4 * (c - 4)) if c < 7 else 248
    for e in range(5): A(f'ds_read_b128 {vr(S0A + 4 * e, 4)}, v222 offset:{512 * e}')
    for r in range(4):
        A(f's_waitcnt vmcnt({3 - r})\nds_write_b128 v224, {vr(32 + 4 * r, 4)} offset:{1024 * r}')
    stamp(5)
    A('s_waitcnt lgkmcnt(0)')
    for e in range(5): A(f'ds_read_b128 {vr(S0B + 4 * e, 4)}, v223 offset:{512 * (7 - e)}')
    for c in range(5):
        A(f's_waitcnt lgkmcnt({4 - c})')
        A(f'v_mfma_f32_16x16x32_bf16 {vr(acc(c), 4)}, v[12:15], {vr(S0B + 4 * c, 4)}, 0')
    g1 = [(a, e) for a in range(5) for e in range(5 - a)]
    A('s_mov_b32 s14, 0')
    A.label('L_g1')
    A(f'''s_cmp_eq_u32 s14, 3
        s_movk_i32 s11, 128
        s_cselect_b32 s10, -384, s11
        v_add_u32 v225, s10, v222
        v_add_u32 v226, s10, v223''')
    for half in range(2):
        ca, cb = (S0A, S0B) if half == 0 else (S1A, S1B)
        na, nb_ = (S1A, S1B) if half == 0 else (S0A, S0B)
        rd = []
        for e in range(5):
            if half == 0:
                rd.append(f'ds_read_b128 {vr(na + 4 * e, 4)}, v222 offset:{512 * e + 64}')
                rd.append(f'ds_read_b128 {vr(nb_ + 4 * e, 4)}, v223 offset:{512 * (7 - e) + 64}')
            else:
                rd.append(f'ds_read_b128 {vr(na + 4 * e, 4)}, v225 offset:{512 * e}')
                rd.append(f'ds_read_b128 {vr(nb_ + 4 * e, 4)}, v226 offset:{512 * (7 - e)}')
        A('s_waitcnt lgkmcnt(0)')
        for i, (a, e) in enumerate(g1):
            A(f'v_mfma_f32_16x16x32_bf16 {vr(acc(a + e), 4)}, {vr(ca + 4 * a, 4)}, {vr(cb + 4 * e, 4)}, {vr(acc(a + e), 4)}')
            if i < len(rd): A(rd[i])
    A(f'''v_mov_b32 v222, v225
        v_mov_b32 v223, v226
        s_add_u32 s14, s14, 1
        s_cmp_lt_u32 s14, 4
        s_cbranch_scc1 L_g1''')
    for e in range(5, 8):
        A(f'ds_read_b128 {vr(S0A + 4 * e, 4)}, v222 offset:{512 * e}')
        A(f'ds_read_b128 {vr(S0B + 4 * e, 4)}, v223 offset:{512 * (7 - e)}')
    stamp(6)

    def stage_addr():
        A(f'''v_and_b32 v6, 1, v5
            v_lshlrev_b32 v6, 5, v6
            v_lshl_add_u32 v6, v4, 1, v6
            v_lshrrev_b32 v7, 1, v5
            v_add_u32 v6, v6, v7
            v_lshlrev_b32 v6, 2, v6
            v_add_u32 v6, {sW}, v6
            v_and_b32 v7, 7, v4
            v_xor_b32 v6, v6, v7
            v_lshlrev_b32 v6, 4, v6
            v_add_u32 v227, {STG}, v6''')

    def stage_tiles(tiles, tmp):
        for p in range(0, len(tiles), 2):
            c0 = tiles[p]; c1 = tiles[p + 1] if p + 1 < len(tiles) else None
            R = tmp + 2 * p
            A(f'v_cvt_pk_bf16_f32 v{R}, v{acc(c0)}, v{acc(c0) + 1}\nv_cvt_pk_bf16_f32 v{R + 1}, v{acc(c0) + 2}, v{acc(c0) + 3}')
            if c1 is not None:
                A(f'v_cvt_pk_bf16_f32 v{R + 2}, v{acc(c1)}, v{acc(c1) + 1}\nv_cvt_pk_bf16_f32 v{R + 3}, v{acc(c1) + 2}, v{acc(c1) + 3}')
            else:
                A(f'v_mov_b32 v{R + 2}, v{R}\nv_mov_b32 v{R + 3}, v{R + 1}')
        for p in range(0, len(tiles), 2):
            R = tmp + 2 * p
            A(f'v_permlane16_swap_b32 v{R}, v{R + 2}\nv_permlane16_swap_b32 v{R + 1}, v{R + 3}')
        for p in range(0, len(tiles), 2):
            R = tmp + 2 * p
            if p + 1 < len(tiles):
                A(f'ds_write_b128 v227, {vr(R, 4)} offset:{2048 * p}')
            else:
                A(f'''s_mov_b64 s[12:13], exec
                    s_mov_b32 exec_lo, 0xffff
                    s_mov_b32 exec_hi, 0xffff
                    ds_write_b128 v227, {vr(R, 4)} offset:{2048 * p}
                    s_mov_b64 exec, s[12:13]''')

    stage_addr()
    stage_tiles([0, 1, 2, 3, 4], 16)
    A('s_waitcnt lgkmcnt(0)\ns_barrier')
    param_loads()
    for c in range(5, 8):
        A(f'v_mfma_f32_16x16x32_bf16 {vr(acc(c), 4)}, v[12:15], {vr(S0B + 4 * c, 4)}, 0')
    A('s_mov_b32 s14, 0')
    A.label('L_g2')
    for a in range(8):
        if a <= 5: A('s_waitcnt lgkmcnt(10)')
        for c in (5, 6, 7):
            e = c - a
            if e >= 0: A(f'v_mfma_f32_16x16x32_bf16 {vr(acc(c), 4)}, {vr(S0A + 4 * a, 4)}, {vr(S0B + 4 * e, 4)}, {vr(acc(c), 4)}')
        A(f'ds_read_b128 {vr(S0A + 4 * a, 4)}, v222 offset:{512 * a + 64}')
        A(f'ds_read_b128 {vr(S0B + 4 * (7 - a), 4)}, v223 offset:{512 * a + 64}')
    A(f'''v_add_u32 v222, 64, v222
        v_add_u32 v223, 64, v223
        s_cmp_lg_u32 s14, 4
        s_cbranch_scc1 L_g2_nb
        s_barrier''')
    A.label('L_g2_nb')
    A(f'''s_add_u32 s14, s14, 1
        s_cmp_lt_u32 s14, 8
        s_cbranch_scc1 L_g2''')
    stamp(7)
    stage_tiles([5, 6, 7], 16)
    A('s_waitcnt lgkmcnt(0)\ns_barrier')

    def stage_out(first_tb, idx_reg, n, tmp):
        A(f'''v_lshrrev_b32 v6, 3, v{idx_reg}
            v_and_b32 v6, 7, v6
            v_xor_b32 v6, v6, v{idx_reg}
            v_lshlrev_b32 v6, 4, v6
            v_add_u32 v6, {STG}, v6
            v_lshrrev_b32 v7, 2, v{idx_reg}
            v_mul_u32_u24 v7, 10240, v7
            v_and_b32 v8, 3, v{idx_reg}
            v_lshl_add_u32 v7, v8, 4, v7
            s_lshl_b32 s10, {sRID}, 6
            s_add_u32 s10, s10, {YIN + first_tb * 10240}
            v_add_u32 v7, s10, v7''')
        for i in range(n): A(f'ds_read_b128 {vr(tmp + 4 * i, 4)}, v6 offset:{1024 * i}')
        for i in range(n):
            A(f's_mov_b32 s10, {16 * 10240 * i}\ns_waitcnt lgkmcnt({n - 1 - i})\nbuffer_store_dwordx4 {vr(tmp + 4 * i, 4)}, v7, {rWS}, s10 offen sc1')

    stage_out(160, 0, 1, 16)
    stamp(8)
    A('s_branch L_row')

    A.label('L_conv_w4')
    A('s_waitcnt vmcnt(0)\ns_barrier')
    A(f'''s_mul_i32 s10, {sRID}, 3277
        s_lshr_b32 s10, s10, 16
        s_lshl_b32 s10, s10, 11
        s_add_u32 s10, s10, {FLAG}
        v_and_b32 v2, 31, v1
        v_lshlrev_b32 v2, 6, v2
        v_add_u32 v2, s10, v2''')
    stamp(3)
    poll(lambda: A(f'buffer_load_dword v3, v2, {rWS}, 0 offen sc1'), lambda: A(f'v_cmp_ne_u32 vcc, {sTAG}, v3'), sleep=1)
    stamp(4)
    A('s_barrier')

    def allflags_4():
        A(f'''v_lshlrev_b32 v2, 6, v1
            v_add_u32 v2, {FLAG}, v2
            s_movk_i32 s10, 4096
            s_movk_i32 s11, 8192
            s_movk_i32 s12, 12288''')
        def ld():
            for i, so in enumerate(('0', 's10', 's11', 's12')): A(f'buffer_load_dword v{3 + i}, v2, {rWS}, {so} offen sc1')
        def ck():
            A(f'''v_xor_b32 v3, {sTAG}, v3
                v_xor_b32 v4, {sTAG}, v4
                v_xor_b32 v5, {sTAG}, v5
                v_xor_b32 v6, {sTAG}, v6
                v_or3_b32 v3, v3, v4, v5
                v_or_b32 v3, v3, v6
                v_cmp_ne_u32 vcc, 0, v3''')
        poll(ld, ck, sleep=8)
    allflags_4()
    A(f'''s_cmp_lg_u32 {sWG}, 0
        s_cbranch_scc1 L_noepoch
        v_mov_b32 v2, {EPOCH}
        s_mov_b64 s[12:13], exec
        s_mov_b64 exec, 1
        buffer_store_dword v139, v2, {rWS}, 0 offen
        s_mov_b64 exec, s[12:13]''')
    A.label('L_noepoch')
    stamp(5)
    A('s_barrier')
    stage_out(0, 1, 10, 16)
    stamp(6)
    A('s_barrier')
    A('s_barrier')
    A('v_add_u32 v9, 256, v1')
    stage_out(160, 9, 2, 16)
    stamp(8)
    A('s_branch L_row_w4')

    A.label('L_nonconv')
    A(f'''s_waitcnt vmcnt(7)
        s_mov_b32 s10, 0xbfb8aa3b          ; -log2(e)''')
    unpack(4, 130)
    A('''v_mul_f32 v6, s10, v4
        v_mul_f32 v7, s10, v5
        v_exp_f32 v6, v6
        v_exp_f32 v7, v7
        v_add_f32 v6, 1.0, v6
        v_add_f32 v7, 1.0, v7
        v_rcp_f32 v6, v6
        v_rcp_f32 v7, v7
        v_mul_f32 v4, v4, v6
        v_mul_f32 v5, v5, v7
        v_cvt_pk_bf16_f32 v6, v4, v5''')
    unpack(4, 6)
    A(f'''v_lshlrev_b32 v6, 3, v0
        v_add_u32 v6, {SILU}, v6
        ds_write_b64 v6, v[4:5]
        s_cmp_eq_u32 {sW}, 4
        s_cbranch_scc1 L_nc_w4
        s_sub_u32 s10, {sRID}, 36
        s_cmp_lt_u32 {sRID}, 58
        s_cselect_b32 s14, {sRID}, s10
        s_cselect_b32 s11, 1, 0
        s_cmp_ge_u32 {sRID}, 94
        s_cselect_b32 s81, 1, s11
        s_mov_b32 s80, s14
        s_cmp_eq_u32 s81, 0
        s_cbranch_scc1 L_nc_nomod1''')
    srd(rT, 40, 640 * 7680)
    A(f'''v_lshrrev_b32 v2, 3, v1
        s_mul_i32 s10, {sW}, 160
        v_add_u32 v2, s10, v2
        v_lshlrev_b32 v8, 2, v2
        v_add_u32 v8, {SILU}, v8
        v_mul_u32_u24 v2, 7680, v2
        v_and_b32 v3, 7, v1
        v_lshl_add_u32 v2, v3, 4, v2
        s_lshl_b32 s10, s80, 7
        v_add_u32 v2, s10, v2
        s_mov_b32 s10, 0''')
    for j in range(20):
        A(f'buffer_load_dwordx4 {vr(32 + 4 * j, 4)}, v2, {rT}, s10 offen')
        if j < 19: A(f's_add_u32 s10, s10, {8 * 7680}')
    A('s_waitcnt vmcnt(25) lgkmcnt(0)\ns_barrier')
    flag_store()
    stamp(3)
    for j in range(20): A(f'ds_read_b32 v{112 + j if j < 19 else 9}, v8 offset:{32 * j}')
    sreg = lambda j: 112 + j if j < 19 else 9
    for k in range(8): A(f'v_mov_b32 v{16 + k}, 0')
    A('s_waitcnt lgkmcnt(0)')
    for j in range(20):
        A(f's_waitcnt vmcnt({19 - j})')
        for d in range(4): unpack(24 + 2 * d, 32 + 4 * j + d)
        s = sreg(j)
        sp = s & ~1
        sel = 'op_sel:[0,1,0] op_sel_hi:[1,1,1]' if s & 1 else 'op_sel:[0,0,0] op_sel_hi:[1,0,1]'
        if j == 19: A('s_nop 0')
        for d in range(4):
            A(f'v_pk_fma_f32 {vr(16 + 2 * d, 2)}, {vr(24 + 2 * d, 2)}, {vr(sp, 2)}, {vr(16 + 2 * d, 2)} {sel}')
    A(f'''v_lshlrev_b32 v2, 5, v1
        s_lshl_b32 s10, {sW}, 11
        s_add_u32 s10, s10, {MODP}
        v_add_u32 v2, s10, v2
        ds_write_b128 v2, v[16:19]
        ds_write_b128 v2, v[20:23] offset:16
        s_branch L_nc_join''')
    A.label('L_nc_nomod1')
    A('s_waitcnt vmcnt(5) lgkmcnt(0)\ns_barrier')
    flag_store()
    stamp(3)
    A.label('L_nc_join')
    row_lds_addrs()
    A('s_waitcnt vmcnt(0)')
    ln1_from_packed(64)
    wr_loads()
    A(f'''s_lshl_b32 s10, {sW}, 12
        s_add_u32 s10, s10, {FLAG}
        v_lshlrev_b32 v2, 6, v1
        v_add_u32 v2, s10, v2''')
    poll(lambda: A(f'buffer_load_dword v3, v2, {rWS}, 0 offen sc1'), lambda: A(f'v_cmp_ne_u32 vcc, {sTAG}, v3'), sleep=8)
    lds_sync4(CNT, 2)
    stamp(4)
    A(f'''s_cmp_eq_u32 s81, 0
        s_cbranch_scc1 L_nc_nomod2
        s_cmp_lg_u32 {sW}, 0
        s_cbranch_scc1 L_nc_nomod2
        v_lshlrev_b32 v2, 2, v1
        v_add_u32 v2, {MODP}, v2''')
    for i in range(32): A(f'ds_read_b32 v{32 + i}, v2 offset:{256 * i}')
    A('s_waitcnt lgkmcnt(0)')
    n = 32
    while n > 2:
        n //= 2
        for i in range(0, n, 2): A(f'v_pk_add_f32 {vr(32 + i, 2)}, {vr(32 + i, 2)}, {vr(32 + n + i, 2)}')
    A(f'''v_add_f32 v32, v32, v33
        v_mov_b32_dpp v33, v32 quad_perm:[1,0,3,2] row_mask:0xf bank_mask:0xf
        v_cvt_pk_bf16_f32 v32, v32, v33
        s_lshl_b32 s10, s80, 7
        s_add_u32 s10, s10, {MODV}
        v_lshlrev_b32 v2, 1, v1
        v_add_u32 v2, s10, v2
        s_mov_b64 s[12:13], exec
        s_mov_b32 exec_lo, 0x55555555
        s_mov_b32 exec_hi, 0x55555555
        buffer_store_dword v32, v2, {rWS}, 0 offen sc1
        s_mov_b64 exec, s[12:13]''')
    A.label('L_nc_nomod2')
    stamp(5)
    param_loads()
    A('s_branch L_row')

    A.label('L_nc_w4')
    A(f'''s_waitcnt vmcnt(0) lgkmcnt(0)
        s_barrier''')
    stamp(3)
    A(f'''s_cmp_ge_u32 {sRID}, 94
        s_cbranch_scc1 L_row_w4
        s_cmp_ge_u32 {sRID}, 54
        s_cbranch_scc1 L_nc_w4_down''')

    def gu_index(dst):
        A(f'''s_and_b32 s10, {sRID}, 7
            s_lshr_b32 s11, {sRID}, 3
            s_mul_i32 {dst}, s10, 7
            s_add_u32 {dst}, {dst}, s11
            s_cmp_eq_u32 s10, 7
            s_cselect_b32 s10, 1, 0
            s_sub_u32 {dst}, {dst}, s10''')

    def dn_index(dst):
        A(f'''s_sub_u32 s10, {sRID}, 54
            s_and_b32 s11, s10, 7
            s_lshr_b32 s10, s10, 3
            s_mul_i32 {dst}, s11, 5
            s_add_u32 {dst}, {dst}, s10''')

    gu_index('s14')
    srd(rT, 32, 640 * 3456)
    srd(rT2, 34, 640 * 3456)
    A(f'''v_lshrrev_b32 v2, 2, v1
        v_mul_u32_u24 v2, 3456, v2
        v_and_b32 v3, 3, v1
        v_lshl_add_u32 v2, v3, 4, v2
        s_lshl_b32 s14, s14, 6
        v_add_u32 v2, s14, v2
        s_mov_b32 s10, 0
        s_mov_b32 s11, 0''')
    A.label('L_gu_dma')
    A(f'''s_mov_b32 m0, s11
        s_add_u32 s12, s11, 40960
        buffer_load_dwordx4 v2, {rT}, s10 offen lds
        s_mov_b32 m0, s12
        s_add_u32 s11, s11, 1024
        buffer_load_dwordx4 v2, {rT2}, s10 offen lds
        s_add_u32 s10, s10, {16 * 3456}
        s_cmp_lt_u32 s11, 40960
        s_cbranch_scc1 L_gu_dma
        s_branch L_row_w4''')
    A.label('L_nc_w4_down')
    dn_index('s14')
    srd(rT, 36, 1728 * 1280)
    A(f'''v_lshrrev_b32 v2, 1, v1
        v_mul_u32_u24 v2, 1280, v2
        v_and_b32 v3, 1, v1
        v_lshl_add_u32 v2, v3, 4, v2
        s_lshl_b32 s14, s14, 5
        v_add_u32 v2, s14, v2
        s_mov_b32 s10, 0
        s_mov_b32 s11, 0''')
    A.label('L_dn_dma')
    A(f'''s_mov_b32 m0, s11
        s_add_u32 s11, s11, 1024
        buffer_load_dwordx4 v2, {rT}, s10 offen lds
        s_add_u32 s10, s10, {32 * 1280}
        s_cmp_lt_u32 s11, 55296
        s_cbranch_scc1 L_dn_dma
        s_branch L_row_w4''')

    A.label('L_row')
    XF, GH, CB, SB, GB, WR = 2, 22, 42, 62, 82, 102
    ZP = 122
    IN = 228
    A(f'''s_mul_i32 s10, {sTB}, 10240
        s_mul_i32 s11, {sW}, 2560
        s_add_u32 s10, s10, s11
        s_add_u32 s10, s10, {YIN}
        v_lshlrev_b32 v224, 4, v1
        v_add_u32 v222, s10, v224
        v_add_u32 v223, 2048, v222
        v_mov_b32 v225, {OOB}
        v_cmp_gt_u32 vcc, 32, v1
        v_cndmask_b32 v223, v225, v223, vcc
        s_mul_i32 s10, {sW}, {UCH}
        s_add_u32 s10, s10, {UB}
        v_add_u32 v224, s10, v224
        v_lshrrev_b32 v225, 4, v1
        v_lshlrev_b32 v225, 7, v225
        v_and_b32 v226, 2, v1
        v_lshl_add_u32 v225, v226, 5, v225
        v_and_b32 v226, 12, v1
        v_lshl_add_u32 v225, v226, 2, v225
        v_and_b32 v226, 1, v1
        v_lshl_add_u32 v225, v226, 3, v225
        v_add_u32 v225, s10, v225''')
    top, done = newlab('mp'), newlab('mpd')
    A('s_mov_b32 s15, 0')
    A.label(top)
    A('s_waitcnt vmcnt(0)')
    any_sentinel(range(MP, MP + 60), 226)
    A(f'''s_cbranch_vccz {done}
        s_sleep 8
        s_add_u32 s15, s15, 1
        s_cmp_ge_u32 s15, {SPIN}
        s_cbranch_scc1 {done}''')
    param_loads()
    A(f's_branch {top}')
    A.label(done)
    stamp(9)

    def inbox_loads():
        A(f'''buffer_load_dwordx4 {vr(IN, 4)}, v222, {rWS}, 0 offen sc1
            buffer_load_dwordx4 {vr(IN + 4, 4)}, v222, {rWS}, 0 offen offset:1024 sc1
            buffer_load_dwordx4 {vr(IN + 8, 4)}, v223, {rWS}, 0 offen sc1''')
    inbox_loads()
    ln_stats(LN1P, 240, 248, 249)
    for p in range(10):
        x = XF + 2 * p
        unpack(x, XP + p)
        A(f'v_pk_fma_f32 v[240:241], {vr(x, 2)}, v[248:249], v[248:249] op_sel:[0,0,1] op_sel_hi:[1,0,1]')
        unpack(242, MP + 10 + p)
        unpack(244, MP + p)
        unpack(246, MP + 20 + p)
        A(f'''v_pk_fma_f32 v[242:243], v[240:241], v[242:243], v[240:241]
            v_pk_add_f32 v[242:243], v[242:243], v[244:245]
            v_pk_mul_f32 {vr(GH + 2 * p, 2)}, v[242:243], v[246:247]''')
        unpack(CB + 2 * p, MP + 40 + p)
        A(f'v_pk_add_f32 {vr(CB + 2 * p, 2)}, {vr(CB + 2 * p, 2)}, 1.0 op_sel_hi:[1,0]')
        unpack(SB + 2 * p, MP + 30 + p)
        unpack(GB + 2 * p, MP + 50 + p)
        unpack(WR + 2 * p, WRP + p)
    stamp(10)
    top, done = newlab('in'), newlab('ind')
    A('s_mov_b32 s15, 0')
    A.label(top)
    A('s_waitcnt vmcnt(0)')
    any_sentinel(range(IN, IN + 12), 226)
    A(f'''s_cbranch_vccz {done}
        s_sleep {opt.get('insleep', 4)}
        s_add_u32 s15, s15, 1
        s_cmp_ge_u32 s15, {SPIN}
        s_cbranch_scc1 {done}''')
    inbox_loads()
    A(f's_branch {top}')
    A.label(done)
    stamp(11)
    for r in range(3): A(f'ds_write_b128 v224, {vr(IN + 4 * r, 4)} offset:{1024 * r}')
    A('s_waitcnt lgkmcnt(0)')
    Z = 152
    X1 = 162
    X1P = 182
    H2 = 192
    H2P = 212
    for j in range(5): A(f'ds_read_b64_tr_b16 {vr(Z + 2 * j, 2)}, v225 offset:{512 * j}')
    for p in range(10):
        if p % 2 == 0: A(f's_waitcnt lgkmcnt({4 - p // 2})')
        unpack(240 + 2 * (p & 1), Z + p)
        A(f'v_pk_fma_f32 {vr(X1 + 2 * p, 2)}, {vr(GH + 2 * p, 2)}, {vr(240 + 2 * (p & 1), 2)}, {vr(XF + 2 * p, 2)}')
        A(f'v_cvt_pk_bf16_f32 v{X1P + p}, v{X1 + 2 * p}, v{X1 + 2 * p + 1}')
    for p in range(10): unpack(X1 + 2 * p, X1P + p)
    ln_partials(X1, 150, LN2P, 240)
    A('s_waitcnt lgkmcnt(0)\ns_barrier')
    ln_stats(LN2P, 240, 248, 249)
    for p in range(10):
        A(f'v_pk_fma_f32 {vr(H2 + 2 * p, 2)}, {vr(X1 + 2 * p, 2)}, v[248:249], v[248:249] op_sel:[0,0,1] op_sel_hi:[1,0,1]')
    for p in range(10):
        A(f'v_pk_fma_f32 {vr(H2 + 2 * p, 2)}, {vr(H2 + 2 * p, 2)}, {vr(CB + 2 * p, 2)}, {vr(SB + 2 * p, 2)}')
    for p in range(10): A(f'v_cvt_pk_bf16_f32 v{H2P + p}, v{H2 + 2 * p}, v{H2 + 2 * p + 1}')
    for p in range(10): unpack(H2 + 2 * p, H2P + p)
    A(f'v_pk_mul_f32 v[240:241], {vr(H2, 2)}, {vr(WR, 2)}\nv_pk_mul_f32 v[242:243], {vr(H2 + 2, 2)}, {vr(WR + 2, 2)}')
    for p in range(2, 10):
        a = 240 + 2 * (p & 1)
        A(f'v_pk_fma_f32 {vr(a, 2)}, {vr(H2 + 2 * p, 2)}, {vr(WR + 2 * p, 2)}, {vr(a, 2)}')
    A(f'''v_pk_add_f32 v[240:241], v[240:241], v[242:243]
        v_lshlrev_b32 v243, 4, v133
        s_lshl_b32 s10, {sW}, 2
        v_add_f32 v240, v240, v241
        v_add_u32 v243, {RP}, v243
        v_mov_b32 v241, v240
        v_permlane32_swap_b32 v240, v241
        v_add_f32 v240, v240, v241
        v_add_u32 v242, s10, v243
        v_mov_b32 v241, v240
        v_permlane16_swap_b32 v240, v241
        v_add_f32 v240, v240, v241
        v_add_f32_dpp v240, v240, v240 row_ror:8 row_mask:0xf bank_mask:0xf
        ds_write_b32 v242, v240
        s_waitcnt lgkmcnt(0)
        s_barrier''')
    dpp = 'row_mask:0xf bank_mask:0xf'
    A(f'''ds_read_b128 v[244:247], v243
        s_lshl_b32 s10, {sTB}, 3
        s_sub_u32 s10, 2047, s10
        v_sub_u32 v241, s10, v133          ; 2047 - row
        s_waitcnt lgkmcnt(0)
        v_pk_add_f32 v[244:245], v[244:245], v[246:247]
        v_add_f32 v240, v244, v245
        v_cvt_pk_bf16_f32 v240, v240, v240
        v_ashrrev_i32 v242, 31, v240
        v_or_b32 v242, 0x80000000, v242
        v_xor_b32 v240, v240, v242
        v_and_b32 v240, 0xffff0000, v240
        v_or_b32 v240, v240, v241          ; key
        v_max_u32_dpp v244, v240, v240 quad_perm:[1,0,3,2] {dpp}
        v_max_u32_dpp v244, v244, v244 quad_perm:[2,3,0,1] {dpp}
        v_max_u32_dpp v244, v244, v244 row_half_mirror {dpp}
        v_cmp_eq_u32 s[12:13], v240, v244
        v_cndmask_b32 v242, v240, 0, s[12:13]
        v_max_u32_dpp v245, v242, v242 quad_perm:[1,0,3,2] {dpp}
        v_max_u32_dpp v245, v245, v245 quad_perm:[2,3,0,1] {dpp}
        v_max_u32_dpp v245, v245, v245 row_half_mirror {dpp}
        s_lshl_b32 s10, {sTB}, 6
        s_add_u32 s10, s10, {GRAN}
        v_mov_b32 v246, s10
        v_cmp_eq_u32 vcc, v240, v245
        s_mul_i32 s10, {sTB}, 2560
        v_add_u32 v247, s10, v132
        v_add_u32 v241, 1280, v247
        v_cndmask_b32 v247, v247, v241, vcc
        s_or_b64 s[12:13], s[12:13], vcc
        s_mov_b64 s[80:81], exec
        s_cmp_lg_u32 {sW}, 0
        s_cbranch_scc1 L_nogran
        s_mov_b64 exec, 1
        buffer_store_dwordx2 v[244:245], v246, {rWS}, 0 offen sc1''')
    A.label('L_nogran')
    A(f'''s_mov_b64 exec, s[12:13]
        s_mov_b32 s10, {H2C}''')
    for j in range(5): A(f'buffer_store_dwordx2 {vr(H2P + 2 * j, 2)}, v247, {rWS}, s10 offen offset:{64 * j} sc1')
    A(f's_mov_b32 s10, {X1C}')
    for j in range(5): A(f'buffer_store_dwordx2 {vr(X1P + 2 * j, 2)}, v247, {rWS}, s10 offen offset:{64 * j} sc1')
    A('s_mov_b64 exec, s[80:81]')
    stamp(12)
    for p in range(10):
        A(f'v_pk_fma_f32 {vr(X1 + 2 * p, 2)}, {vr(GB + 2 * p, 2)}, {vr(H2 + 2 * p, 2)}, {vr(X1 + 2 * p, 2)}')
    for p in range(10): A(f'v_cvt_pk_bf16_f32 v{Z + p}, v{X1 + 2 * p}, v{X1 + 2 * p + 1}')
    for j in range(5): A(f'buffer_store_dwordx2 {vr(Z + 2 * j, 2)}, v131, {rOUT}, 0 offen offset:{64 * j} sc1')

    def flag2():
        skip = newlab('f2')
        A(f'''v_mov_b32 v240, {CNT + 4}
            v_mov_b32 v241, 1
            s_lshl_b32 s10, {sTB}, 6
            s_add_u32 s10, s10, {FLAG2}
            v_mov_b32 v242, s10
            s_waitcnt vmcnt(0)
            s_mov_b64 s[12:13], exec
            s_mov_b64 exec, 1
            ds_add_rtn_u32 v243, v240, v241
            s_waitcnt lgkmcnt(0)
            v_cmp_eq_u32 vcc, 3, v243
            s_cbranch_vccz {skip}
            buffer_store_dword v139, v242, {rWS}, 0 offen sc1''')
        A.label(skip)
        A('s_mov_b64 exec, s[12:13]')

    A(f'''s_cmp_eq_u32 {sCONV}, 1
        s_cbranch_scc1 L_row_end
        s_cmp_ge_u32 {sRID}, 94
        s_cbranch_scc1 L_row_end
        s_cmp_ge_u32 {sRID}, 54
        s_cbranch_scc1 L_down''')
    A(f'''v_lshrrev_b32 v2, 4, v1
        v_lshlrev_b32 v2, 3, v2
        v_bfe_u32 v3, v1, 2, 2
        v_add_u32 v2, v2, v3
        s_mul_i32 s10, {sW}, 160
        v_add_u32 v2, s10, v2
        v_lshlrev_b32 v2, 6, v2
        v_and_b32 v3, 3, v1
        v_lshl_add_u32 v2, v3, 3, v2''')
    BF = 16
    for i in range(5):
        for T in range(4):
            for h in range(2):
                A(f'ds_read_b64_tr_b16 {vr(BF + 16 * i + 4 * T + 2 * h, 2)}, v2 offset:{2048 * i + 256 * h + 32 * (T & 1) + 40960 * (T >> 1)}')
    flag2()
    A(f'''v_and_b32 v3, 1, v1
        v_lshlrev_b32 v3, 2, v3
        v_add_u32 v3, {DECL}, v3
        v_lshrrev_b32 v4, 4, v1
        v_lshlrev_b32 v4, 4, v4
        s_mul_i32 s10, {sW}, 320
        v_add_u32 v4, s10, v4
        s_barrier                          ; F1
        ds_read_b32 v5, v3
        s_waitcnt lgkmcnt(0)
        v_add_u32 v4, v4, v5''')
    stamp(13)
    AF = 96
    poll(lambda: [A(f'buffer_load_dwordx4 {vr(AF + 4 * i, 4)}, v4, {rWS}, 0 offen offset:{64 * i} sc1') for i in range(5)],
         lambda: any_sentinel(range(AF, AF + 20), 6), sleep=1)
    stamp(14)
    for i in range(5):
        for T in range(4):
            A(f'v_mfma_f32_16x16x32_bf16 {vr(116 + 4 * T, 4)}, {vr(AF + 4 * i, 4)}, {vr(BF + 16 * i + 4 * T, 4)}, ' + ('0' if i == 0 else vr(116 + 4 * T, 4)))
    A(f'''v_and_b32 v2, 15, v1
        v_lshlrev_b32 v2, 2, v2
        s_lshl_b32 s10, {sW}, 9
        s_add_u32 s10, s10, {MODP}
        v_add_u32 v2, s10, v2''')
    for T in range(4):
        A(f'ds_write2_b32 v2, v{116 + 4 * T}, v{117 + 4 * T} offset0:{16 * T} offset1:{64 + 16 * T}')
    A(f'''s_waitcnt lgkmcnt(0)
        s_barrier                          ; F2
        s_cmp_lg_u32 {sW}, 0
        s_cbranch_scc1 L_fin
        v_lshrrev_b32 v2, 5, v1
        v_lshlrev_b32 v3, 8, v2
        v_and_b32 v4, 31, v1
        v_lshl_add_u32 v3, v4, 2, v3
        v_add_u32 v3, {MODP}, v3''')
    for w in range(4): A(f'ds_read2_b32 {vr(8 + 2 * w, 2)}, v3 offset0:{128 * w} offset1:{128 * w + 32}' if w < 2 else
                         f'ds_read2_b32 {vr(8 + 2 * w, 2)}, v5 offset0:{128 * (w - 2)} offset1:{128 * (w - 2) + 32}') if w != 1 else \
        A(f'ds_read2_b32 {vr(8 + 2 * w, 2)}, v3 offset0:{128 * w} offset1:{128 * w + 32}\nv_add_u32 v5, 1024, v3')
    gu_index('s14')
    A(f'''s_lshl_b32 s14, s14, 7
        s_add_u32 s14, s14, {AVEC}
        v_lshlrev_b32 v6, 6, v2
        v_lshl_add_u32 v6, v4, 1, v6
        v_add_u32 v6, s14, v6
        s_mov_b32 s10, 0xbfb8aa3b
        s_waitcnt lgkmcnt(0)
        v_pk_add_f32 v[8:9], v[8:9], v[10:11]
        v_pk_add_f32 v[12:13], v[12:13], v[14:15]
        v_pk_add_f32 v[8:9], v[8:9], v[12:13]
        v_cvt_pk_bf16_f32 v10, v8, v9''')
    unpack(8, 10)
    A('''v_mul_f32 v10, s10, v8
        v_exp_f32 v10, v10
        v_add_f32 v10, 1.0, v10
        v_rcp_f32 v10, v10
        v_mul_f32 v8, v8, v10''')
    bf16r('v8', 'v8')
    A(f'''v_mul_f32 v8, v8, v9
        v_mov_b32_dpp v9, v8 quad_perm:[1,0,3,2] {dpp}
        v_cvt_pk_bf16_f32 v8, v8, v9
        s_mov_b32 exec_lo, 0x55555555
        s_mov_b32 exec_hi, 0x55555555
        buffer_store_dword v8, v6, {rWS}, 0 offen sc1
        s_mov_b64 exec, -1''')
    stamp(15)
    A('s_branch L_fin')

    A.label('L_down')
    A(f'''v_lshrrev_b32 v2, 4, v1
        v_lshlrev_b32 v2, 3, v2
        v_bfe_u32 v3, v1, 2, 2
        v_add_u32 v2, v2, v3
        s_mul_i32 s10, {sW}, 448
        v_add_u32 v2, s10, v2
        v_lshlrev_b32 v2, 5, v2
        v_and_b32 v3, 3, v1
        v_lshl_add_u32 v2, v3, 3, v2''')
    for i in range(14):
        for h in range(2):
            A(f'ds_read_b64_tr_b16 {vr(16 + 4 * i + 2 * h, 2)}, v2 offset:{1024 * i + 128 * h}')
    flag2()
    A(f'''v_and_b32 v3, 1, v1
        v_lshlrev_b32 v3, 6, v3
        v_lshrrev_b32 v4, 4, v1
        v_lshl_add_u32 v4, v4, 4, v3
        s_mul_i32 s10, {sW}, {14 * 128}
        s_add_u32 s10, s10, {AVEC}
        v_add_u32 v4, s10, v4
        s_cmp_eq_u32 {sW}, 3
        s_cselect_b32 s11, {OOB}, 0
        s_barrier                          ; D0''')
    stamp(13)
    AD = 72
    poll(lambda: [A(f'buffer_load_dwordx4 {vr(AD + 4 * i, 4)}, v4, {rWS}, {"0" if i < 12 else "s11"} offen offset:{128 * i} sc1') for i in range(14)],
         lambda: any_sentinel(range(AD, AD + 56), 6), sleep=opt.get('avsleep', 4))
    stamp(14)
    for i in range(12):
        A(f'v_mfma_f32_16x16x32_bf16 v[8:11], {vr(AD + 4 * i, 4)}, {vr(16 + 4 * i, 4)}, ' + ('0' if i == 0 else 'v[8:11]'))
    A(f's_cmp_eq_u32 {sW}, 3\ns_cbranch_scc1 L_dn_skip')
    for i in range(12, 14):
        A(f'v_mfma_f32_16x16x32_bf16 v[8:11], {vr(AD + 4 * i, 4)}, {vr(16 + 4 * i, 4)}, v[8:11]')
    A.label('L_dn_skip')
    A(f'''v_and_b32 v2, 15, v1
        v_lshlrev_b32 v2, 4, v2
        s_lshl_b32 s10, {sW}, 2
        s_add_u32 s10, s10, {MODP}
        v_add_u32 v2, s10, v2
        ds_write2_b32 v2, v8, v9 offset0:0 offset1:64
        s_waitcnt lgkmcnt(0)
        s_barrier                          ; D1
        s_branch L_fin''')

    A.label('L_row_end')
    flag2()
    A('s_branch L_fin')

    A.label('L_row_w4')
    A(f'''s_waitcnt vmcnt(0)
        s_barrier
        s_barrier''')
    stamp(12)
    A(f'''s_cmp_eq_u32 {sCONV}, 1
        s_cbranch_scc1 L_fin
        s_cmp_ge_u32 {sRID}, 94
        s_cbranch_scc1 L_fin
        s_cmp_ge_u32 {sRID}, 54
        s_cbranch_scc1 L_down_w4
        v_lshlrev_b32 v2, 6, v1
        v_add_u32 v2, {GRAN}, v2
        s_movk_i32 s10, 4096
        s_movk_i32 s11, 8192
        s_movk_i32 s12, 12288''')
    poll(lambda: [A(f'buffer_load_dwordx2 {vr(4 + 2 * i, 2)}, v2, {rWS}, {so} offen sc1') for i, so in enumerate(('0', 's10', 's11', 's12'))],
         lambda: any_sentinel(range(4, 12), 12), sleep=opt.get('grsleep', 2))
    stamp(13)

    def wavemax(reg, sdst):
        A(f'''v_max_u32_dpp v{reg}, v{reg}, v{reg} row_shr:1 {dpp}
            v_max_u32_dpp v{reg}, v{reg}, v{reg} row_shr:2 {dpp}
            v_max_u32_dpp v{reg}, v{reg}, v{reg} row_shr:4 {dpp}
            v_max_u32_dpp v{reg}, v{reg}, v{reg} row_shr:8 {dpp}
            v_max_u32_dpp v{reg}, v{reg}, v{reg} row_bcast:15 row_mask:0xa bank_mask:0xf
            v_max_u32_dpp v{reg}, v{reg}, v{reg} row_bcast:31 row_mask:0xc bank_mask:0xf
            v_readlane_b32 {sdst}, v{reg}, 63''')
    A('v_max3_u32 v12, v4, v6, v8\nv_max_u32 v12, v12, v10')
    wavemax(12, 's80')
    for i in range(4):
        A(f'v_cmp_eq_u32 vcc, s80, v{4 + 2 * i}\nv_cndmask_b32 v{4 + 2 * i}, v{4 + 2 * i}, v{5 + 2 * i}, vcc')
    A('v_max3_u32 v12, v4, v6, v8\nv_max_u32 v12, v12, v10')
    wavemax(12, 's81')

    def cand_offsets():
        A(f'''s_and_b32 s10, s80, 0xffff
            s_sub_u32 s10, 2047, s10
            s_and_b32 s10, s10, 2047
            s_and_b32 s11, s81, 0xffff
            s_sub_u32 s11, 2047, s11
            s_and_b32 s11, s11, 2047
            s_lshr_b32 s12, s10, 3
            s_lshr_b32 s13, s11, 3
            s_cmp_eq_u32 s12, s13
            s_cselect_b32 s14, 1280, 0
            s_mul_i32 s12, s12, 2560
            s_mul_i32 s13, s13, 2560
            s_add_u32 s13, s13, s14''')
    cand_offsets()
    A(f'''s_add_u32 s12, s12, {H2C}
        s_add_u32 s13, s13, {H2C}
        v_mov_b32 v2, {DECL}
        v_mov_b32 v4, s12
        v_mov_b32 v5, s13
        ds_write_b64 v2, v[4:5]
        s_waitcnt lgkmcnt(0)
        s_barrier                          ; F1
        s_cmp_lg_u32 {sRID}, 0
        s_cbranch_scc1 L_nodec
        v_mov_b32 v2, {DEC}
        v_mov_b32 v4, s80
        v_mov_b32 v5, s81
        s_mov_b64 exec, 1
        buffer_store_dwordx2 v[4:5], v2, {rWS}, 0 offen sc1
        s_mov_b64 exec, -1''')
    A.label('L_nodec')
    A('s_barrier\ns_branch L_fin')

    A.label('L_down_w4')
    A(f'v_mov_b32 v2, {DEC}')
    poll(lambda: A(f'buffer_load_dwordx2 v[4:5], v2, {rWS}, 0 offen sc1'), lambda: any_sentinel((4, 5), 6), sleep=opt.get('decsleep', 4))
    A('''v_readfirstlane_b32 s80, v4
        v_readfirstlane_b32 s81, v5
        s_barrier''')
    stamp(13)
    dn_index('s82')
    cand_offsets()
    A(f'''v_bfe_u32 v3, v1, 4, 1
        v_cmp_eq_u32 vcc, 1, v3
        v_mov_b32 v4, s10
        v_mov_b32 v5, s11
        v_cndmask_b32 v4, v4, v5, vcc
        v_mov_b32 v5, s12
        v_mov_b32 v6, s13
        v_cndmask_b32 v5, v5, v6, vcc
        v_mov_b32 v6, s80
        v_mov_b32 v7, s81
        v_cndmask_b32 v6, v6, v7, vcc       ; key
        v_and_b32 v7, 15, v1
        v_lshlrev_b32 v7, 1, v7
        s_lshl_b32 s82, s82, 5
        v_add_u32 v7, s82, v7
        v_lshrrev_b32 v8, 3, v4
        v_lshlrev_b32 v8, 6, v8
        v_add_u32 v8, {FLAG2}, v8''')
    poll(lambda: A(f'buffer_load_dword v9, v8, {rWS}, 0 offen sc1'), lambda: A(f'v_cmp_ne_u32 vcc, {sTAG}, v9'), sleep=2)
    A(f'''v_add_u32 v5, v5, v7
        s_mov_b32 s10, {H2C}
        s_mov_b32 s11, {X1C}
        s_mov_b32 s12, {MODV + 5 * 1280}
        buffer_load_ushort v10, v5, {rWS}, s10 offen sc1
        buffer_load_ushort v11, v5, {rWS}, s11 offen sc1
        buffer_load_ushort v12, v7, {rWS}, s12 offen sc1
        v_mul_u32_u24 v4, 1280, v4
        v_add_u32 v4, v4, v7
        v_ashrrev_i32 v13, 31, v6
        v_not_b32 v13, v13
        v_or_b32 v13, 0x80000000, v13
        v_xor_b32 v6, v6, v13
        v_and_b32 v6, 0xffff0000, v6        ; r
        s_mov_b32 s10, 0xbfb8aa3b
        v_mul_f32 v6, s10, v6
        v_exp_f32 v6, v6
        v_add_f32 v6, 1.0, v6
        v_rcp_f32 v6, v6''')
    bf16r('v6', 'v6')
    A(f'''v_and_b32 v13, 31, v1
        v_lshlrev_b32 v13, 4, v13
        v_add_u32 v13, {MODP}, v13
        s_waitcnt vmcnt(0)
        v_lshlrev_b32 v10, 16, v10
        v_lshlrev_b32 v11, 16, v11
        v_lshlrev_b32 v12, 16, v12''')
    stamp(14)
    A(f'''s_barrier                          ; D1
        ds_read_b128 v[16:19], v13
        s_waitcnt lgkmcnt(0)
        v_pk_add_f32 v[16:17], v[16:17], v[18:19]
        v_add_f32 v16, v16, v17''')
    bf16r('v16', 'v16')
    A('v_mul_f32 v16, v16, v6')
    bf16r('v16', 'v16')
    A('v_add_f32 v16, v16, v10')
    bf16r('v16', 'v16')
    A('v_mul_f32 v16, v16, v12')
    bf16r('v16', 'v16')
    A(f'''v_add_f32 v16, v16, v11
        v_cvt_pk_bf16_f32 v16, v16, v16
        s_mov_b32 exec_lo, -1
        s_mov_b32 exec_hi, 0
        buffer_store_short v16, v4, {rOUT}, 0 offen sc1
        s_mov_b64 exec, -1''')
    stamp(15)
    A.label('L_fin')
    stamp_flush()
    A.label('L_exit')
    A('s_endpgm')
    body = A.finish()
    hdr = open('cdna_kernels/' + NAME + '.s.ref').read().split('; Override launch')[0]
    k = NAME + '_kernel'
    return (hdr + f'; @launch grid=(256,1,1) block=(320,1,1) lds={LDS_BYTES}\n'
            f'.amdgcn_target "amdgcn-amd-amdhsa--gfx950"\n.text\n.globl {k}\n.p2align 8\n.type {k},@function\n{k}:\n' + body +
            f'''.section .rodata,"a"
.p2align 6
.amdhsa_kernel {k}
  .amdhsa_next_free_vgpr 256
  .amdhsa_next_free_sgpr 102
  .amdhsa_accum_offset 256
  .amdhsa_group_segment_fixed_size 0
  .amdhsa_kernarg_size 128
  .amdhsa_user_sgpr_count 2
  .amdhsa_user_sgpr_kernarg_segment_ptr 1
  .amdhsa_system_sgpr_workgroup_id_x 1
  .amdhsa_float_denorm_mode_32 3
.end_amdhsa_kernel
''')


if __name__ == '__main__':
    out = sys.argv[1] if len(sys.argv) > 1 else 'cdna_kernels/' + NAME + '.s'
    open(out, 'w').write(build(stamps='--stamps' in sys.argv))
```
